```python
import torch

def _softmax(x, axis=-1):
    return torch.softmax(x, dim=axis)
def _gelu(x):
    return torch.nn.functional.gelu(x, approximate="tanh")
def _silu(x):
    return torch.nn.functional.silu(x)
def _sigmoid(x):
    return torch.sigmoid(x)
def _layernorm(x, axis=-1, eps=1e-5):
    m = x.mean(dim=axis, keepdim=True)
    v = x.var(dim=axis, keepdim=True, unbiased=False)
    return (x - m) / torch.sqrt(v + eps)
def _scatter_add(tgt, idx, src, axis=0):
    return tgt.clone().index_add_(axis, idx, src)
def _segment_sum(src, seg, n):
    out = torch.zeros((n,) + src.shape[1:], dtype=src.dtype)
    return out.index_add_(0, seg, src)
def _pad(x, pw):
    flat = tuple(v for pair in reversed(pw) for v in pair)
    return torch.nn.functional.pad(x, flat)

kernel_name = 'gated_mix__linear_attn_block__glu_gated_glu__prompt'

def setup_inputs():

    _w = (lambda a: (lambda t: t.to(torch.bfloat16) if t.is_floating_point() else t)(torch.as_tensor(a)))
    def _A_setup():
        B, S, D = 1, 2048, 640
        return {
            "x": _w((lambda *s: torch.randn(*s, dtype=torch.bfloat16) * 0.05)(B, S, D)),
            "wqkv": _w((lambda *s: torch.randn(*s, dtype=torch.bfloat16) * 0.8)(D, 3 * D)),
            "wo": _w((lambda *s: torch.randn(*s, dtype=torch.bfloat16) * 0.2)(D, D)),
        }
    _A_in = _A_setup()

    def _B_setup():
        B, S, D, F = 1, 2048, 640, 1728
        return {
            "x": _w((lambda *s: torch.randn(*s, dtype=torch.bfloat16) * 0.05)(B, S, D)),
            "w_gate": _w((lambda *s: torch.randn(*s, dtype=torch.bfloat16) * 0.4)(D, F)),
            "w_up": _w((lambda *s: torch.randn(*s, dtype=torch.bfloat16) * 0.05)(D, F)),
            "w_down": _w((lambda *s: torch.randn(*s, dtype=torch.bfloat16) * 0.05)(F, D)),
        }
    _B_in = _B_setup()

    return {
        "A_x": _A_in["x"],
        "A_wqkv": _A_in["wqkv"],
        "A_wo": _A_in["wo"],
        "B_x": _B_in["x"],
        "B_w_gate": _B_in["w_gate"],
        "B_w_up": _B_in["w_up"],
        "B_w_down": _B_in["w_down"],
        "gate_w": _w((lambda *s: torch.randn(*s, dtype=torch.bfloat16) * 0.05)(640) * 16.0),
    }

def reference(A_x, A_wqkv, A_wo, B_x, B_w_gate, B_w_up, B_w_down, gate_w):
    def _A_ref(x, wqkv, wo):
        B, S, D = x.shape
        H = 32; Dh = D // H
        qkv = (lambda x, *d: x.permute(*d))((x @ wqkv).reshape(B, S, 3, H, Dh), 2, 0, 3, 1, 4)
        q, k, v = qkv[0], qkv[1], qkv[2]
        phi = lambda t: torch.where(t > 0, t + 1, torch.exp(t)) + 1e-6
        pq, pk = phi(q), phi(k)
        kv = torch.einsum("bhsd,bhse->bhde", pk, v)
        z = torch.einsum("bhsd->bhd", pk)
        num = torch.einsum("bhqd,bhde->bhqe", pq, kv)
        den = torch.einsum("bhqd,bhd->bhq", pq, z)[..., None] + 1e-6
        o = num / den
        return (lambda x, *d: x.permute(*d))(o, 0, 2, 1, 3).reshape(B, S, D) @ wo

    def _B_ref(x, w_gate, w_up, w_down):
        g = torch.einsum("bsd,df->bsf", x, w_gate)
        u = torch.einsum("bsd,df->bsf", x, w_up)
        h = _sigmoid(g) * u
        return torch.einsum("bsf,fd->bsd", h, w_down)

    x = A_x
    g = _sigmoid((x * gate_w).sum(-1, keepdims=True))
    a = _A_ref(x, A_wqkv, A_wo)
    b = _B_ref(x, B_w_gate, B_w_up, B_w_down)
    return g * a + (1 - g) * b
```

```python
class A:
    def __init__(s):
        s.L = []
    def __call__(s, line):
        s.L.append("    " + line)
    def lab(s, name):
        s.L.append(name + ":")
    def cm(s, c):
        s.L.append("    ; " + c)
    def raw(s, t):
        s.L.append(t)
    def text(s):
        return "\n".join(s.L) + "\n"

def v(n): return "v%d" % n
def vr(n, c): return "v[%d:%d]" % (n, n + c - 1)
def s(n): return "s%d" % n
def sr(n, c): return "s[%d:%d]" % (n, n + c - 1)

S, D, F = 2048, 640, 1728
NKS = 74
WS_A2   = 0
A2_SIZE = 128 * NKS * 1024
WS_W2   = 0xA00000
W2_SIZE = 8 * NKS * 5 * 1024
WS_WOP  = 0xD00000
WOP_SIZE = 20 * 40 * 1024
WS_KVP  = 0xE00000
KVP_SIZE = 8 * 8 * 18 * 1024
WS_G    = 0xF80000
G_SIZE  = 2048 * 4
WS_DN   = 0xF90000
DN_SIZE = 4 * 9 * 1024

SRD3 = 0x00020000
OOB = 0x40000000

def srd(a, d, base, size, off=0):
    if off:
        a("s_add_u32 s%d, s%d, 0x%x" % (d, base, off))
        a("s_addc_u32 s%d, s%d, 0" % (d + 1, base + 1))
    else:
        a("s_mov_b32 s%d, s%d" % (d, base))
        a("s_mov_b32 s%d, s%d" % (d + 1, base + 1))
    a("s_mov_b32 s%d, 0x%x" % (d + 2, size))
    a("s_mov_b32 s%d, 0x%x" % (d + 3, SRD3))

def kd(name, vgpr=256, sgpr=102, accum=256):
    return """.section .rodata,"a"
.p2align 6
.amdhsa_kernel %s
  .amdhsa_next_free_vgpr %d
  .amdhsa_next_free_sgpr %d
  .amdhsa_accum_offset %d
  .amdhsa_group_segment_fixed_size 0
  .amdhsa_kernarg_size 88
  .amdhsa_user_sgpr_count 2
  .amdhsa_user_sgpr_kernarg_segment_ptr 1
  .amdhsa_system_sgpr_workgroup_id_x 1
.end_amdhsa_kernel
.text
""" % (name, vgpr, sgpr, accum)

def khead(name):
    return ".globl %s\n.p2align 8\n.type %s,@function\n%s:\n" % (name, name, name)

import os
TS = bool(int(os.environ.get("TS", "0")))
WS_TS = 0x1000000
def stamp(a, idx, cyc=False):
    if not TS: return
    a("s_memtime s[94:95]" if cyc else "s_memrealtime s[94:95]")
    a("s_waitcnt lgkmcnt(0)")
    a("s_mov_b32 s%d, s94" % (86 + idx))
def stamp_flush(a, n, wsptr=36):
    if not TS: return
    a("s_add_u32 s96, s%d, 0x%x" % (wsptr, WS_TS))
    a("s_addc_u32 s97, s%d, 0" % (wsptr + 1))
    a("s_mov_b32 s98, 0x100000")
    a("s_mov_b32 s99, 0x20000")
    a("s_lshl_b32 s94, s2, 3")
    a("s_add_u32 s94, s94, s3")
    a("s_lshl_b32 s94, s94, 6")
    a("v_mov_b32 v1, 0")
    for i in range(n):
        a("v_mov_b32 v2, s%d" % (86 + i))
        a("buffer_store_dword v2, v1, s[96:99], s94 offen offset:%d" % (4 * i))
        a("s_nop 1")
```

```python
from common import *

import os
EXP = os.environ.get('EXP', '')
XB = 0
WBASE = 98304
GWOFF = 159744
LDS_K1 = 163840

XF = [16, 32]
WF = 48
vXr0, vXr1, vWr0, vWr1, vG = 2, 3, 4, 5, 6
ACC = 64
def acc(i, j): return ACC + (j * 4 + i) * 4
GF = 240

def decode(a):
    a("s_load_dwordx16 s[16:31], s[0:1], 0")
    a("s_load_dwordx4 s[32:35], s[0:1], 64")
    a("s_load_dwordx2 s[36:37], s[0:1], 80")
    a("s_cmp_ge_u32 s2, 256")
    a("s_cbranch_scc1 L_k1_end")
    a("v_lshrrev_b32 v1, 6, v0")
    a("v_and_b32 v0, 63, v0")
    a("v_readfirstlane_b32 s3, v1")
    a("s_and_b32 s4, s2, 7")
    a("s_lshr_b32 s5, s2, 3")
    a("s_lshr_b32 s6, s4, 2")
    a("s_and_b32 s7, s4, 3")
    a("s_mul_i32 s8, s7, 15")
    a("s_add_u32 s8, s8, 1")
    a("s_lshr_b32 s8, s8, 1")
    a("s_and_b32 s9, s7, 1")
    a("s_sub_u32 s9, 8, s9")
    a("s_and_b32 s10, s5, 3")
    a("s_lshl_b32 s52, s6, 2")
    a("s_add_u32 s52, s52, s10")
    a("s_lshr_b32 s11, s5, 2")
    a("s_add_u32 s12, s8, s11")
    a("s_mov_b32 s54, 0")
    a("s_mov_b32 s53, s12")
    a("s_cmp_lt_u32 s12, 8")
    a("s_cbranch_scc1 L_role_done")
    a("s_mov_b32 s54, 1")
    a("s_sub_u32 s53, s12, 8")
    a("s_cmp_lt_u32 s12, 12")
    a("s_cbranch_scc1 L_role_done")
    a("s_mov_b32 s54, 2")
    a("s_sub_u32 s53, s12, 12")
    a.lab("L_role_done")
    a("s_waitcnt lgkmcnt(0)")
    stamp(a, 0)
    a("s_cmp_ge_u32 s11, s9")
    a("s_cbranch_scc1 L_spare")
    a("s_cmp_ge_u32 s3, 4")
    a("s_cbranch_scc1 L_loader")
    a("s_cmp_eq_u32 s54, 0")
    a("s_cbranch_scc1 L_cons_kv")
    a("s_cmp_eq_u32 s54, 1")
    a("s_cbranch_scc1 L_cons_q")
    a("s_branch L_cons_ffn")

def endw(a):
    if TS:
        stamp(a, 3)
        a("s_waitcnt vmcnt(0)")
        stamp(a, 5)
        stamp_flush(a, 8)
    a("s_endpgm")

def issue_W(a):
    for i in range(3):
        a("s_add_u32 m0, s57, %d" % (i * 1024))
        a("s_nop 0")
        a("buffer_load_dwordx4 v%d, s[44:47], s56 offen lds" % (10 + i))
    a("s_add_u32 s56, s56, s60")
    a("s_add_u32 s61, s61, 1")
    a("s_add_u32 s57, s57, 12288")
    a("s_cmp_eq_u32 s61, 5")
    a("s_cselect_b32 s61, 0, s61")
    a("s_cselect_b32 s69, 61440, 0")
    a("s_sub_u32 s57, s57, s69")

def issue_X(a, hf):
    for i in range(4):
        a("s_add_u32 m0, s59, %d" % (hf * 16384 + i * 1024))
        a("s_add_u32 s69, s58, %d" % (hf * 163840 + i * 10240))
        a("buffer_load_dwordx4 v%d, s[40:43], s69 offen lds" % (13 + (i & 1)))
    if hf == 1:
        a("s_add_u32 s58, s58, 128")
        a("s_add_u32 s62, s62, 1")
        a("s_add_u32 s59, s59, 32768")
        a("s_cmp_eq_u32 s62, 3")
        a("s_cselect_b32 s62, 0, s62")
        a("s_cselect_b32 s69, 98304, 0")
        a("s_sub_u32 s59, s59, s69")

def loader(a):
    a.lab("L_loader")
    a("s_sub_u32 s4, s3, 4")
    a("s_and_b32 s5, s4, 1")
    a("s_lshr_b32 s6, s4, 1")
    srd(a, 40, 16, S * D * 2)
    srd(a, 48, 30, D * 2)
    a("s_mov_b32 s47, 0x%x" % SRD3)
    a("s_mov_b32 s67, 32")
    a("s_cmp_eq_u32 s54, 2")
    a("s_cbranch_scc0 L_ld_qkv")
    a("s_cmp_eq_u32 s6, 0")
    a("s_cselect_b32 s44, s24, s26")
    a("s_cselect_b32 s45, s25, s27")
    a("s_mov_b32 s46, %d" % (D * F * 2))
    a("s_mov_b32 s68, %d" % (F * 2))
    a("s_mul_i32 s64, s53, 192")
    a("s_add_u32 s65, s64, 64")
    a("s_add_u32 s66, s64, 128")
    a("s_branch L_ld_common")
    a.lab("L_ld_qkv")
    a("s_mov_b32 s44, s18")
    a("s_mov_b32 s45, s19")
    a("s_mov_b32 s46, %d" % (D * 3 * D * 2))
    a("s_mov_b32 s68, %d" % (3 * D * 2))
    a("s_cmp_eq_u32 s54, 1")
    a("s_cbranch_scc0 L_ld_kv")
    a("s_mul_i32 s64, s53, 320")
    a("s_mul_i32 s7, s6, 192")
    a("s_add_u32 s64, s64, s7")
    a("s_add_u32 s65, s64, 64")
    a("s_add_u32 s66, s64, 128")
    a("s_cmp_eq_u32 s6, 1")
    a("s_cselect_b32 s66, 0x%x, s66" % OOB)
    a("s_branch L_ld_common")
    a.lab("L_ld_kv")
    a("s_mul_i32 s64, s53, 160")
    a("s_mul_i32 s7, s6, 1280")
    a("s_add_u32 s64, s64, s7")
    a("s_add_u32 s64, s64, 1280")
    a("s_add_u32 s65, s64, 64")
    a("s_add_u32 s66, s64, 128")
    a("s_cmp_eq_u32 s6, 1")
    a("s_cselect_b32 s66, 0x%x, s66" % OOB)
    a("s_cselect_b32 s67, 32, 1280")
    a.lab("L_ld_common")
    a("v_lshrrev_b32 v1, 2, v0")
    a("s_lshl_b32 s7, s5, 4")
    a("v_add_u32 v2, s7, v1")
    a("v_mul_lo_u32 v2, v2, s68")
    a("v_and_b32 v3, 1, v0")
    a("v_lshl_add_u32 v2, v3, 4, v2")
    a("v_lshrrev_b32 v3, 1, v0")
    a("v_lshrrev_b32 v4, 5, v0")
    a("v_xor_b32 v3, v3, v4")
    a("v_and_b32 v3, 1, v3")
    a("v_lshl_add_u32 v5, v3, 5, v2")
    a("v_add_u32 v10, s64, v5")
    a("v_add_u32 v11, s65, v5")
    a("v_mad_u32_u24 v12, v3, s67, v2")
    a("v_add_u32 v12, s66, v12")
    a("v_lshrrev_b32 v1, 3, v0")
    a("v_mul_u32_u24 v1, 0x500, v1")
    a("v_and_b32 v2, 7, v0")
    a("v_lshrrev_b32 v3, 4, v0")
    a("v_xor_b32 v4, v2, v3")
    a("v_lshl_add_u32 v13, v4, 4, v1")
    a("v_xor_b32 v4, 4, v4")
    a("v_lshl_add_u32 v14, v4, 4, v1")
    a("v_lshlrev_b32 v15, 4, v0")
    a("v_add_u32 v16, 0x400, v15")
    a("s_mov_b32 s56, 0")
    a("s_lshl_b32 s60, s68, 5")
    a("s_mov_b32 s61, 0")
    a("s_mul_i32 s7, s5, 6")
    a("s_mul_i32 s8, s6, 3")
    a("s_add_u32 s7, s7, s8")
    a("s_lshl_b32 s7, s7, 10")
    a("s_add_u32 s57, s7, %d" % WBASE)
    a("s_lshl_b32 s7, s52, 8")
    a("s_lshl_b32 s8, s4, 5")
    a("s_add_u32 s7, s7, s8")
    a("s_mul_i32 s58, s7, 1280")
    a("s_lshl_b32 s59, s4, 12")
    a("s_mov_b32 s62, 0")
    a("s_mov_b32 m0, %d" % GWOFF)
    a("s_nop 0")
    a("buffer_load_dwordx4 v15, s[48:51], 0 offen lds")
    a("s_mov_b32 m0, %d" % (GWOFF + 1024))
    a("s_nop 0")
    a("buffer_load_dwordx4 v16, s[48:51], 0 offen lds")
    issue_W(a); issue_X(a, 0); issue_X(a, 1)
    issue_W(a)
    issue_X(a, 0); issue_X(a, 1); issue_W(a)
    issue_W(a); issue_X(a, 0)
    stamp(a, 4)
    a("s_waitcnt vmcnt(21)")
    a("s_barrier")
    stamp(a, 1)
    a("s_waitcnt vmcnt(18)")
    a("s_barrier")
    a("s_mov_b32 s63, 7")
    a.lab("L_ld_loop")
    if 'nodma' not in EXP: issue_W(a); issue_X(a, 1)
    a("s_waitcnt vmcnt(14)")
    a("s_barrier")
    if 'nodma' not in EXP: issue_W(a); issue_X(a, 0)
    a("s_waitcnt vmcnt(14)")
    a("s_barrier")
    a("s_sub_u32 s63, s63, 1")
    a("s_cmp_lg_u32 s63, 0")
    a("s_cbranch_scc1 L_ld_loop")
    issue_W(a); issue_X(a, 1)
    a("s_waitcnt vmcnt(14)")
    a("s_barrier")
    issue_W(a)
    a("s_waitcnt vmcnt(10)")
    a("s_barrier")
    a("s_waitcnt vmcnt(3)")
    a("s_barrier")
    a("s_waitcnt vmcnt(0)")
    a("s_barrier")
    a("s_barrier")
    stamp(a, 2)
    endw(a)

def cons_prologue(a, T, gate):
    a("v_and_b32 v7, 15, v0")
    a("v_lshrrev_b32 v8, 4, v0")
    a("v_lshrrev_b32 v9, 1, v7")
    a("v_xor_b32 v9, v9, v8")
    a("v_lshlrev_b32 v9, 4, v9")
    a("v_lshl_add_u32 v9, v7, 7, v9")
    a("s_lshl_b32 s4, s3, 13")
    a("v_add_u32 v%d, s4, v9" % vXr0)
    a("v_xor_b32 v%d, 64, v%d" % (vXr1, vXr0))
    a("v_lshrrev_b32 v9, 1, v8")
    a("v_mul_u32_u24 v9, 0x1800, v9")
    a("v_and_b32 v10, 1, v8")
    a("v_mul_u32_u24 v10, 0x220, v10")
    a("v_add_u32 v9, v9, v10")
    a("v_bfe_u32 v10, v0, 2, 2")
    a("v_lshl_add_u32 v9, v10, 6, v9")
    a("v_and_b32 v10, 3, v0")
    a("v_lshl_add_u32 v9, v10, 3, v9")
    a("v_add_u32 v%d, 0x%x, v9" % (vWr0, WBASE))
    a("v_xor_b32 v%d, 32, v%d" % (vWr1, vWr0))
    if gate:
        a("v_lshlrev_b32 v9, 4, v8")
        a("v_add_u32 v%d, 0x%x, v9" % (vG, GWOFF))
    for j in range(T + (1 if gate else 0)):
        for i in range(4):
            for r in range(4):
                a("v_mov_b32 v%d, 0" % (acc(i, j) + r))
    a("s_mov_b32 s61, 0")
    a("s_mov_b32 s62, 0")
    a("s_mov_b32 s63, 10")
    a("s_mov_b32 s66, 0x%x" % ((-49152) & 0xffffffff))
    a("s_mov_b32 s67, 12288")
    a("s_mov_b32 s68, 0x%x" % ((-65536) & 0xffffffff))
    a("s_mov_b32 s69, 32768")

def wread(a, j, setidx):
    p, tau = j // 2, j % 2
    addr = vWr1 if tau else vWr0
    d = WF + setidx * 4
    return ["ds_read_b64_tr_b16 %s, v%d offset:%d" % (vr(d, 2), addr, p * 1024),
            "ds_read_b64_tr_b16 %s, v%d offset:%d" % (vr(d + 2, 2), addr, p * 1024 + 256)]

def cons_loop(a, T, transposed, gate, name):
    a("s_barrier")
    stamp(a, 1)
    stamp(a, 6, True)
    for i in range(4):
        a("ds_read_b128 %s, v%d offset:%d" % (vr(XF[0] + 4 * i, 4), vXr0, i * 2048))
    for j in range(3):
        for l in wread(a, j, j): a(l)
    a("s_waitcnt lgkmcnt(0)")
    a.lab("L_%s_loop" % name)
    ops = []
    def body(emit):
        ring = 0
        for kap in range(2):
            xc, xn = XF[kap], XF[1 - kap]
            ncol = T + (1 if gate else 0)
            for j in range(ncol):
                fill = []
                isg = gate and j == T
                need = ("G", kap) if isg else ("W", kap, j)
                last = max(k for k, t in enumerate(ops) if t == need) if need in ops else None
                if last is not None:
                    n = len(ops) - 1 - last
                    if j == 0:
                        lx = max([k for k, t in enumerate(ops) if t == ("X", kap)] + [last])
                        n = len(ops) - 1 - lx
                    wait = "s_waitcnt lgkmcnt(%d)" % min(n, 15)
                else:
                    wait = "s_waitcnt lgkmcnt(0)"
                if j == 0:
                    fill.append(("s_add_u32 s61, s61, 1", None))
                    fill.append(("s_cmp_eq_u32 s61, 5", None))
                    fill.append(("s_cselect_b32 s61, 0, s61", None))
                    fill.append(("s_cselect_b32 s64, s66, s67", None))
                if j == 0 and kap == 0:
                    pass
                if j == 1:
                    fill.append(("s_barrier", None))
                    if kap == 0:
                        fill.append(("s_add_u32 s62, s62, 1", None))
                        fill.append(("s_cmp_eq_u32 s62, 3", None))
                        fill.append(("s_cselect_b32 s62, 0, s62", None))
                        fill.append(("s_cselect_b32 s65, s68, s69", None))
                    else:
                        fill.append(("v_add_u32 v%d, s65, v%d" % (vXr0, vXr0), None))
                if j == T - 3:
                    fill.append(("v_add_u32 v%d, s64, v%d" % (vWr0, vWr0), None))
                    fill.append(("v_add_u32 v%d, s64, v%d" % (vWr1, vWr1), None))
                if j < T:
                    jn = j + 3
                    kn = kap
                    if jn >= T:
                        jn -= T; kn = 1 - kap
                    for l in wread(a, jn, (ring + 3) % 4):
                        fill.append((l, ("W", kn, jn)))
                if 2 <= j <= 5:
                    i = j - 2
                    addr = vXr1 if kap == 0 else vXr0
                    fill.append(("ds_read_b128 %s, v%d offset:%d" % (vr(xn + 4 * i, 4), addr, i * 2048), ("X", 1 - kap)))
                if j == 6 and kap == 0:
                    fill.append(("v_add_u32 v%d, s65, v%d" % (vXr1, vXr1), None))
                if gate and j == 6:
                    fill.append(("ds_read_b128 %s, v%d" % (vr(GF, 4), vG), ("G", kap)))
                if gate and j == 7:
                    fill.append(("v_add_u32 v%d, 64, v%d" % (vG, vG), None))
                w = GF if isg else WF + ring * 4
                if emit: a(wait)
                fi = 0
                for i in range(4):
                    x = xc + 4 * i
                    c = acc(i, j)
                    if emit:
                        if transposed:
                            a("v_mfma_f32_16x16x32_bf16 %s, %s, %s, %s" % (vr(c, 4), vr(w, 4), vr(x, 4), vr(c, 4)))
                        else:
                            a("v_mfma_f32_16x16x32_bf16 %s, %s, %s, %s" % (vr(c, 4), vr(x, 4), vr(w, 4), vr(c, 4)))
                    rem = len(fill) - fi
                    take = -(-rem // (4 - i))
                    for t, tag in fill[fi:fi + take]:
                        if emit and not ('nolds' in EXP and t.startswith('ds_read')) and not ('nox' in EXP and t.startswith('ds_read_b128')): a(t)
                        if tag is not None: ops.append(tag)
                    fi += take
                if not isg: ring = (ring + 1) % 4
    ops.extend([("X", 0)] * 4 + [("W", 0, 0)] * 2 + [("W", 0, 1)] * 2 + [("W", 0, 2)] * 2)
    body(False)
    body(True)
    a("s_sub_u32 s63, s63, 1")
    a("s_cmp_lg_u32 s63, 0")
    a("s_cbranch_scc1 L_%s_loop" % name)
    a("s_waitcnt lgkmcnt(0)")
    a("s_nop 7")
    a("s_nop 7")
    stamp(a, 2)
    stamp(a, 7, True)

C_NL2E, C_ONE, C_L2E, C_EPS = 70, 72, 74, 76
def consts(a):
    a("s_mov_b32 s70, 0xbfb8aa3b"); a("s_mov_b32 s71, 0xbfb8aa3b")
    a("s_mov_b32 s72, 1.0"); a("s_mov_b32 s73, 1.0")
    a("s_mov_b32 s74, 0x3fb8aa3b"); a("s_mov_b32 s75, 0x3fb8aa3b")
    a("s_mov_b32 s76, 0x358637bd"); a("s_mov_b32 s77, 0x358637bd")

def a2_soff(a, ks0_expr_mul, ks0_add):
    a("s_lshl_b32 s4, s52, 4")
    a("s_lshl_b32 s5, s3, 2")
    a("s_add_u32 s4, s4, s5")
    a("s_mul_i32 s4, s4, %d" % NKS)
    a("s_mul_i32 s5, s53, %d" % ks0_expr_mul)
    a("s_add_u32 s4, s4, s5")
    a("s_add_u32 s4, s4, %d" % ks0_add)
    a("s_lshl_b32 s80, s4, 10")
    for i in range(1, 4):
        a("s_add_u32 s%d, s80, %d" % (80 + i, i * NKS * 1024))

def phi_quads(a, quads, tmp):
    for k in range(0, len(quads), 2):
        qs = quads[k:k + 2]
        for n, q in enumerate(qs):
            t = tmp + 4 * n
            a("v_pk_mul_f32 %s, %s, s[74:75]" % (vr(t, 2), vr(q, 2)))
            a("v_pk_mul_f32 %s, %s, s[74:75]" % (vr(t + 2, 2), vr(q + 2, 2)))
        for n, q in enumerate(qs):
            t = tmp + 4 * n
            for r in range(4):
                a("v_exp_f32_e64 v%d, v%d clamp" % (t + r, t + r))
        for n, q in enumerate(qs):
            a("v_pk_add_f32 %s, %s, s[72:73]" % (vr(q, 2), vr(q, 2)))
            a("v_pk_add_f32 %s, %s, s[72:73]" % (vr(q + 2, 2), vr(q + 2, 2)))
        for n, q in enumerate(qs):
            t = tmp + 4 * n
            for r in range(4):
                a("v_max_f32 v%d, v%d, v%d" % (q + r, q + r, t + r))
        for n, q in enumerate(qs):
            a("v_pk_add_f32 %s, %s, s[76:77]" % (vr(q, 2), vr(q, 2)))
            a("v_pk_add_f32 %s, %s, s[76:77]" % (vr(q + 2, 2), vr(q + 2, 2)))

def pack_frag(a, dst, q0, q1):
    a("v_cvt_pk_bf16_f32 v%d, v%d, v%d" % (dst, q0, q0 + 1))
    a("v_cvt_pk_bf16_f32 v%d, v%d, v%d" % (dst + 1, q0 + 2, q0 + 3))
    a("v_cvt_pk_bf16_f32 v%d, v%d, v%d" % (dst + 2, q1, q1 + 1))
    a("v_cvt_pk_bf16_f32 v%d, v%d, v%d" % (dst + 3, q1 + 2, q1 + 3))

ST = ""

def cons_ffn(a):
    a.lab("L_cons_ffn")
    cons_prologue(a, 12, False)
    consts(a)
    srd(a, 44, 36, A2_SIZE, WS_A2)
    a2_soff(a, 3, 0)
    a("v_lshlrev_b32 v7, 4, v0")
    cons_loop(a, 12, True, False, "ffn")
    for i in range(4):
        for jj in range(3):
            gq = [acc(i, 2 * jj), acc(i, 2 * jj + 1)]
            uq = [acc(i, 2 * jj + 6), acc(i, 2 * jj + 7)]
            for q in gq:
                a("v_pk_mul_f32 %s, %s, s[70:71]" % (vr(q, 2), vr(q, 2)))
                a("v_pk_mul_f32 %s, %s, s[70:71]" % (vr(q + 2, 2), vr(q + 2, 2)))
            for q in gq:
                for r in range(4): a("v_exp_f32 v%d, v%d" % (q + r, q + r))
            for q in gq:
                a("v_pk_add_f32 %s, %s, s[72:73]" % (vr(q, 2), vr(q, 2)))
                a("v_pk_add_f32 %s, %s, s[72:73]" % (vr(q + 2, 2), vr(q + 2, 2)))
            for q in gq:
                for r in range(4): a("v_rcp_f32 v%d, v%d" % (q + r, q + r))
            for q, u in zip(gq, uq):
                a("v_pk_mul_f32 %s, %s, %s" % (vr(u, 2), vr(u, 2), vr(q, 2)))
                a("v_pk_mul_f32 %s, %s, %s" % (vr(u + 2, 2), vr(u + 2, 2), vr(q + 2, 2)))
            pack_frag(a, gq[0], uq[0], uq[1])
            a("buffer_store_dwordx4 %s, v7, s[44:47], s%d offen offset:%d%s" % (vr(gq[0], 4), 80 + i, jj * 1024, ST))
    endw(a)

def cons_q(a):
    a.lab("L_cons_q")
    cons_prologue(a, 10, True)
    consts(a)
    srd(a, 44, 36, A2_SIZE, WS_A2)
    srd(a, 48, 36, G_SIZE, WS_G)
    a2_soff(a, 5, 54)
    a("v_lshlrev_b32 v7, 4, v0")
    a("v_add_u32 v8, 0x1000, v7")
    a("s_lshl_b32 s4, s52, 8")
    a("s_lshl_b32 s5, s3, 6")
    a("s_add_u32 s4, s4, s5")
    a("s_lshl_b32 s84, s4, 2")
    a("v_and_b32 v9, 15, v0")
    a("v_lshlrev_b32 v9, 2, v9")
    cons_loop(a, 10, True, True, "q")
    for i in range(4):
        a("v_mul_f32 v%d, s70, v%d" % (acc(i, 10), acc(i, 10)))
    for i in range(4):
        a("v_exp_f32 v%d, v%d" % (acc(i, 10), acc(i, 10)))
    a("s_nop 0")
    for i in range(4):
        a("v_add_f32 v%d, 1.0, v%d" % (acc(i, 10), acc(i, 10)))
    for i in range(4):
        a("v_rcp_f32 v%d, v%d" % (acc(i, 10), acc(i, 10)))
    a("s_cmp_lg_u32 s53, 0")
    a("s_cbranch_scc1 L_q_nogate")
    for i in range(4):
        a("buffer_store_dword v%d, v9, s[48:51], s84 offen offset:%d%s" % (acc(i, 10), i * 64, ST))
    a.lab("L_q_nogate")
    for i in range(4):
        for jj in range(5):
            q0, q1 = acc(i, 2 * jj), acc(i, 2 * jj + 1)
            phi_quads(a, [q0, q1], 16)
            pack_frag(a, q0, q0, q1)
            if jj < 4:
                a("buffer_store_dwordx4 %s, v7, s[44:47], s%d offen offset:%d%s" % (vr(q0, 4), 80 + i, jj * 1024, ST))
            else:
                a("buffer_store_dwordx4 %s, v8, s[44:47], s%d offen%s" % (vr(q0, 4), 80 + i, ST))
    endw(a)

PAIRS = [(0,0),(0,1),(1,0),(1,1),(1,2),(2,1),(2,2),(2,3),(3,2),(3,3),(3,4),(4,3),(4,4)]
def cons_kv(a):
    a.lab("L_cons_kv")
    cons_prologue(a, 10, False)
    consts(a)
    srd(a, 44, 36, KVP_SIZE, WS_KVP)
    a("v_lshlrev_b32 v7, 4, v0")
    cons_loop(a, 10, False, False, "kv")
    ktile = lambda t: t
    vtile = lambda t: 5 if t == 4 else 6 + t
    phi_quads(a, [acc(i, ktile(t)) for t in range(5) for i in range(4)], 16)
    for m in range(2):
        for t in range(5):
            pack_frag(a, acc(2 * m, ktile(t)), acc(2 * m, ktile(t)), acc(2 * m + 1, ktile(t)))
            pack_frag(a, acc(2 * m, vtile(t)), acc(2 * m, vtile(t)), acc(2 * m + 1, vtile(t)))
    for r in range(4):
        a("v_mov_b32 v%d, 0x3f803f80" % (16 + r))
    a("s_nop 1")
    res = [acc(1, j) for j in range(10)] + [acc(3, j) for j in range(10)]
    for m in range(2):
        for n, (te, td) in enumerate(PAIRS):
            c = vr(res[n], 4) if m else "0"
            a("v_mfma_f32_16x16x32_bf16 %s, %s, %s, %s" % (vr(res[n], 4), vr(acc(2 * m, vtile(te)), 4), vr(acc(2 * m, ktile(td)), 4), c))
        for td in range(5):
            n = 13 + td
            c = vr(res[n], 4) if m else "0"
            a("v_mfma_f32_16x16x32_bf16 %s, %s, %s, %s" % (vr(res[n], 4), vr(acc(2 * m, ktile(td)), 4), vr(16, 4), c))
    a("s_nop 7")
    a("s_nop 1")
    a("s_mul_i32 s4, s3, %d" % (18 * 1024))
    a("v_add_u32 v8, s4, v7")
    for n in range(18):
        a("ds_write_b128 v8, %s offset:%d" % (vr(res[n], 4), n * 1024))
    a("s_waitcnt lgkmcnt(0)")
    a("s_barrier")
    a("s_lshl_b32 s4, s3, 10")
    a("v_add_u32 v8, s4, v7")
    a("v_add_u32 v9, 0x9000, v8")
    a("s_lshl_b32 s5, s52, 3")
    a("s_add_u32 s5, s5, s53")
    a("s_mul_i32 s5, s5, 18")
    a("s_add_u32 s5, s5, s3")
    a("s_lshl_b32 s5, s5, 10")
    for k in range(5):
        if k == 4:
            a("s_cmp_ge_u32 s3, 2")
            a("s_cbranch_scc1 L_kv_done")
        base = 64 + k * 16
        for w in range(4):
            a("ds_read_b128 %s, v%d offset:%d" % (vr(base + 4 * w, 4), 8 + w // 2, (w % 2) * 18432 + k * 4096))
        a("s_waitcnt lgkmcnt(0)")
        for w in range(1, 4):
            a("v_pk_add_f32 %s, %s, %s" % (vr(base, 2), vr(base, 2), vr(base + 4 * w, 2)))
            a("v_pk_add_f32 %s, %s, %s" % (vr(base + 2, 2), vr(base + 2, 2), vr(base + 4 * w + 2, 2)))
        a("buffer_store_dwordx4 %s, v7, s[44:47], s5 offen%s" % (vr(base, 4), ST))
        a("s_add_u32 s5, s5, 4096")
    a.lab("L_kv_done")
    endw(a)

def spare(a):
    a.lab("L_spare")
    a("s_lshl_b32 s12, s6, 1")
    a("s_lshr_b32 s13, s7, 1")
    a("s_add_u32 s12, s12, s13")
    a("s_lshl_b32 s12, s12, 2")
    a("s_add_u32 s12, s12, s10")
    a("s_lshl_b32 s12, s12, 3")
    a("s_add_u32 s60, s12, s3")
    srd(a, 40, 28, F * D * 2)
    srd(a, 44, 20, D * D * 2)
    srd(a, 48, 36, W2_SIZE, WS_W2)
    srd(a, 52, 36, WOP_SIZE, WS_WOP)
    a("v_lshrrev_b32 v1, 4, v0")
    a("v_mul_u32_u24 v1, 0x1400, v1")
    a("v_and_b32 v2, 15, v0")
    a("v_lshl_add_u32 v1, v2, 1, v1")
    a("v_lshlrev_b32 v2, 4, v0")
    a.lab("L_sp_loop")
    a("s_cmp_ge_u32 s60, 2160")
    a("s_cbranch_scc1 L_sp_wo")
    a("s_mul_hi_u32 s61, s60, 0x%x" % (-(-(1 << 32) // 40)))
    a("s_mul_i32 s62, s61, 40")
    a("s_sub_u32 s62, s60, s62")
    a("s_mul_i32 s63, s61, %d" % (32 * 1280))
    a("s_lshl_b32 s64, s62, 5")
    a("s_add_u32 s63, s63, s64")
    for n in range(8):
        aa, r = n // 4, n % 4
        a("s_add_u32 s65, s63, %d" % ((16 * aa + r) * 1280))
        a("buffer_load_ushort v%d, v1, s[40:43], s65 offen" % (8 + n))
    a("s_mul_hi_u32 s66, s62, 0x%x" % (-(-(1 << 32) // 5)))
    a("s_mul_i32 s67, s66, 5")
    a("s_sub_u32 s67, s62, s67")
    a("s_mul_i32 s66, s66, %d" % NKS)
    a("s_add_u32 s66, s66, s61")
    a("s_mul_i32 s66, s66, 5")
    a("s_add_u32 s66, s66, s67")
    a("s_lshl_b32 s66, s66, 10")
    a("s_waitcnt vmcnt(0)")
    for n in range(4):
        a("v_lshl_or_b32 v%d, v%d, 16, v%d" % (20 + n, 9 + 2 * n, 8 + 2 * n))
    a("buffer_store_dwordx4 v[20:23], v2, s[48:51], s66 offen%s" % ST)
    a("s_add_u32 s60, s60, 128")
    a("s_branch L_sp_loop")
    a.lab("L_sp_wo")
    a("s_cmp_ge_u32 s60, 2960")
    a("s_cbranch_scc1 L_sp_end")
    a("s_sub_u32 s59, s60, 2160")
    a("s_mul_hi_u32 s61, s59, 0x%x" % (-(-(1 << 32) // 40)))
    a("s_mul_i32 s62, s61, 40")
    a("s_sub_u32 s62, s59, s62")
    a("s_mul_i32 s63, s61, %d" % (32 * 1280))
    a("s_lshl_b32 s64, s62, 5")
    a("s_add_u32 s63, s63, s64")
    for n in range(8):
        aa, r = n // 4, n % 4
        a("s_add_u32 s65, s63, %d" % ((16 * aa + r) * 1280))
        a("buffer_load_ushort v%d, v1, s[44:47], s65 offen" % (8 + n))
    a("s_lshl_b32 s66, s59, 10")
    a("s_waitcnt vmcnt(0)")
    for n in range(4):
        a("v_lshl_or_b32 v%d, v%d, 16, v%d" % (20 + n, 9 + 2 * n, 8 + 2 * n))
    a("buffer_store_dwordx4 v[20:23], v2, s[52:55], s66 offen%s" % ST)
    a("s_add_u32 s60, s60, 128")
    a("s_branch L_sp_wo")
    a.lab("L_sp_end")
    endw(a)

def gen_k1():
    a = A()
    a.raw(khead("k1_kernel"))
    decode(a)
    loader(a)
    cons_ffn(a)
    cons_q(a)
    cons_kv(a)
    spare(a)
    a.lab("L_k1_end")
    a("s_endpgm")
    a.raw(kd("k1_kernel"))
    return a.text()
```

```python
from common import *
ST = ""
LD = ""
def mworker(a, L="k2", item_sgpr=60):
    a("s_cmp_ge_u32 s60, 120")
    a("s_cbranch_scc1 L_%s_done" % L)
    a("s_mul_hi_u32 s4, s60, 0x%x" % (-(-(1 << 32) // 3)))
    a("s_mul_i32 s5, s4, 3")
    a("s_sub_u32 s5, s60, s5")
    a("s_mul_hi_u32 s6, s4, 0x%x" % (-(-(1 << 32) // 5)))
    a("s_mul_i32 s7, s6, 5")
    a("s_sub_u32 s7, s4, s7")
    a("s_and_b32 s8, s4, 1")
    srd(a, 40, 36, WOP_SIZE, WS_WOP)
    srd(a, 44, 36, KVP_SIZE, WS_KVP)
    srd(a, 48, 36, W2_SIZE, WS_W2)
    srd(a, 52, 36, DN_SIZE, WS_DN)
    a("v_lshlrev_b32 v1, 4, v0")
    a("s_sub_u32 s9, s4, 1")
    a("s_ashr_i32 s9, s9, 1")
    a("s_mul_i32 s10, s5, 13")
    a("s_mul_i32 s11, s9, 40")
    a("s_add_u32 s11, s11, s10")
    a("s_lshl_b32 s11, s11, 10")
    a("s_add_u32 s12, s11, %d" % (40 * 1024))
    a("s_cmp_lt_i32 s9, 0")
    a("s_cselect_b32 s11, 0x%x, s11" % OOB)
    a("s_cmp_ge_i32 s9, 19")
    a("s_cselect_b32 s12, 0x%x, s12" % OOB)
    W0, W1 = 16, 72
    for q, (base, sreg) in enumerate(((W0, 11), (W1, 12))):
        for n in range(14):
            if n % 4 == 0 and n:
                a("s_add_u32 s%d, s%d, 4096" % (sreg, sreg))
            a("buffer_load_dwordx4 %s, v1, s[40:43], s%d offen offset:%d" % (vr(base + 4 * n, 4), sreg, (n % 4) * 1024))
    return W0, W1

def mworker2(a, W0, W1, L="k2"):
    KV = 128
    Z = 224
    a("s_mul_i32 s13, s6, 18")
    for dl in range(3):
        a("s_mul_i32 s14, s7, 3")
        a("s_add_u32 s14, s14, %d" % (2 * (dl - 1) & 0xffffffff))
        a("s_add_u32 s14, s14, s13")
        a("s_lshl_b32 s14, s14, 10")
        if dl == 0:
            a("s_cmp_eq_u32 s7, 0")
            a("s_cselect_b32 s14, 0x%x, s14" % OOB)
        if dl == 2:
            a("s_cmp_eq_u32 s7, 4")
            a("s_cselect_b32 s14, 0x%x, s14" % OOB)
        for rb in range(8):
            a("buffer_load_dwordx4 %s, v1, s[44:47], s14 offen%s" % (vr(KV + (dl * 8 + rb) * 4, 4), LD))
            if rb < 7: a("s_add_u32 s14, s14, %d" % (8 * 18 * 1024))
    a("s_add_u32 s14, s13, s7")
    a("s_add_u32 s14, s14, 13")
    a("s_lshl_b32 s14, s14, 10")
    for rb in range(8):
        a("buffer_load_dwordx4 %s, v1, s[44:47], s14 offen%s" % (vr(Z + rb * 4, 4), LD))
        if rb < 7: a("s_add_u32 s14, s14, %d" % (8 * 18 * 1024))
    a("v_lshrrev_b32 v2, 4, v0")
    a("v_and_b32 v3, 15, v0")
    a("s_lshl_b32 s15, s7, 4")
    a("v_add_u32 v4, s15, v3")
    a("v_mul_u32_u24 v4, 205, v4")
    a("v_lshrrev_b32 v4, 12, v4")
    a("s_waitcnt vmcnt(8)")
    for dl in range(3):
        b = KV + dl * 32
        for rb in range(1, 8):
            a("v_pk_add_f32 %s, %s, %s" % (vr(b, 2), vr(b, 2), vr(b + 4 * rb, 2)))
            a("v_pk_add_f32 %s, %s, %s" % (vr(b + 2, 2), vr(b + 2, 2), vr(b + 4 * rb + 2, 2)))
        a("s_lshl_b32 s15, s7, 2")
        a("s_add_u32 s15, s15, %d" % ((4 * (dl - 1)) & 0xffffffff))
        a("v_add_u32 v5, s15, v2")
        a("v_and_b32 v5, 63, v5")
        a("v_mul_u32_u24 v5, 13, v5")
        a("v_lshrrev_b32 v5, 6, v5")
        a("v_cmp_eq_u32 vcc, v4, v5")
        a("s_nop 1")
        for r in range(4):
            a("v_cndmask_b32 v%d, 0, v%d, vcc" % (b + r, b + r))
        a("v_cvt_pk_bf16_f32 v%d, v%d, v%d" % (6 + 2 * dl, b, b + 1))
        a("v_cvt_pk_bf16_f32 v%d, v%d, v%d" % (7 + 2 * dl, b + 2, b + 3))
    Q0, Q1 = 128, 132
    a("s_cmp_eq_u32 s8, 0")
    a("s_cbranch_scc0 L_%s_odd" % L)
    a("v_mov_b32 v128, 0"); a("v_mov_b32 v129, 0"); a("v_mov_b32 v130, v6"); a("v_mov_b32 v131, v7")
    a("v_mov_b32 v132, v8"); a("v_mov_b32 v133, v9"); a("v_mov_b32 v134, v10"); a("v_mov_b32 v135, v11")
    a("s_branch L_%s_q" % L)
    a.lab("L_%s_odd" % L)
    a("v_mov_b32 v128, v6"); a("v_mov_b32 v129, v7"); a("v_mov_b32 v130, v8"); a("v_mov_b32 v131, v9")
    a("v_mov_b32 v132, v10"); a("v_mov_b32 v133, v11"); a("v_mov_b32 v134, 0"); a("v_mov_b32 v135, 0")
    a.lab("L_%s_q" % L)
    a("s_lshl_b32 s15, s8, 3")
    a("v_add_u32 v12, s15, v1")
    a("s_lshr_b32 s16, s4, 1")
    a("s_add_u32 s16, s16, 54")
    D = 136
    for n in range(14):
        d = D + 4 * n
        a("v_mfma_f32_16x16x32_bf16 %s, %s, %s, 0" % (vr(d, 4), vr(Q0, 4), vr(W0 + 4 * n, 4)))
    for n in range(14):
        d = D + 4 * n
        a("v_mfma_f32_16x16x32_bf16 %s, %s, %s, %s" % (vr(d, 4), vr(Q1, 4), vr(W1 + 4 * n, 4), vr(d, 4)))
    a("s_nop 7")
    for n in range(14):
        d = D + 4 * n
        a("s_add_u32 s17, s10, %d" % n)
        a("s_mul_hi_u32 s18, s17, 0x%x" % (-(-(1 << 32) // 5)))
        a("s_mul_i32 s19, s18, 5")
        a("s_sub_u32 s19, s17, s19")
        a("s_mul_i32 s18, s18, %d" % NKS)
        a("s_add_u32 s18, s18, s16")
        a("s_mul_i32 s18, s18, 5")
        a("s_add_u32 s18, s18, s19")
        a("s_lshl_b32 s18, s18, 10")
        a("v_cvt_pk_bf16_f32 v%d, v%d, v%d" % (d, d, d + 1))
        a("v_cvt_pk_bf16_f32 v%d, v%d, v%d" % (d + 1, d + 2, d + 3))
        a("buffer_store_dwordx2 %s, v12, s[48:51], s18 offen%s" % (vr(d, 2), ST))
    a("s_mul_hi_u32 s17, s4, 0x%x" % (-(-(1 << 32) // 10)))
    a("s_mul_i32 s18, s17, 10")
    a("s_sub_u32 s18, s4, s18")
    a("s_lshr_b32 s19, s18, 1")
    a("s_cmp_eq_u32 s5, 2")
    a("s_cbranch_scc1 L_%s_done" % L)
    a("s_cmp_eq_u32 s5, 0")
    a("s_cbranch_scc1 L_%s_dn" % L)
    a("s_cmp_eq_u32 s19, 0")
    a("s_cbranch_scc1 L_%s_done" % L)
    a.lab("L_%s_dn" % L)
    a("s_cmp_ge_u32 s19, 3")
    a("s_cselect_b32 s20, 1, 0")
    a("s_add_u32 s20, s20, s5")
    a("s_lshl_b32 s21, s20, 1")
    a("s_add_u32 s21, s21, s19")
    a("s_mul_i32 s22, s17, 9")
    a("s_add_u32 s21, s21, s22")
    a("s_lshl_b32 s21, s21, 10")
    a("s_waitcnt vmcnt(14)")
    for rb in range(1, 8):
        a("v_pk_add_f32 %s, %s, %s" % (vr(Z, 2), vr(Z, 2), vr(Z + 4 * rb, 2)))
        a("v_pk_add_f32 %s, %s, %s" % (vr(Z + 2, 2), vr(Z + 2, 2), vr(Z + 4 * rb + 2, 2)))
    a("s_lshl_b32 s22, s18, 2")
    a("v_add_u32 v4, s22, v2")
    a("v_mul_u32_u24 v4, 13, v4")
    a("v_lshrrev_b32 v4, 6, v4")
    a("v_and_b32 v5, 3, v3")
    a("v_lshlrev_b32 v5, 2, v5")
    a("v_lshrrev_b32 v6, 2, v3")
    a("v_add_u32 v5, v5, v6")
    a("s_lshl_b32 s22, s20, 4")
    a("v_add_u32 v5, s22, v5")
    a("v_mul_u32_u24 v6, 13, v5")
    a("v_lshrrev_b32 v6, 6, v6")
    a("v_cmp_eq_u32 vcc, v4, v6")
    a("s_nop 1")
    for r in range(4):
        a("v_cndmask_b32 v%d, 0, v%d, vcc" % (Z + r, Z + r))
    a("v_cvt_pk_bf16_f32 v%d, v%d, v%d" % (Z, Z, Z + 1))
    a("v_cvt_pk_bf16_f32 v%d, v%d, v%d" % (Z + 1, Z + 2, Z + 3))
    a("buffer_store_dwordx2 %s, v12, s[52:55], s21 offen%s" % (vr(Z, 2), ST))
    a.lab("L_%s_done" % L)

def gen_k2():
    a = A()
    a.raw(khead("k2_kernel"))
    a("s_load_dwordx2 s[36:37], s[0:1], 80")
    a("s_cmp_ge_u32 s2, 16")
    a("s_cbranch_scc1 L_k2_done")
    a("v_lshrrev_b32 v1, 6, v0")
    a("v_and_b32 v0, 63, v0")
    a("v_readfirstlane_b32 s3, v1")
    a("s_lshl_b32 s60, s2, 3")
    a("s_waitcnt lgkmcnt(0)")
    a("s_add_u32 s60, s60, s3")
    W0, W1 = mworker(a)
    mworker2(a, W0, W1)
    a("s_endpgm")
    a.raw(kd("k2_kernel"))
    return a.text()
```

```python
from common import *
LD = ""
LDS_K3 = 163840
OPB = 0
REDB = 81920
ACC = 16
def acc(i, t): return ACC + (t * 4 + i) * 4
RING = 96
def bufA(b, i): return RING + b * 36 + 4 * i
def bufW(b, t): return RING + b * 36 + 16 + 4 * t

def k3_decode(a):
    a("s_and_b32 s4, s2, 7")
    a("s_lshr_b32 s5, s2, 3")
    a("s_lshr_b32 s6, s4, 1")
    a("s_and_b32 s7, s4, 1")
    a("s_and_b32 s8, s5, 7")
    a("s_lshl_b32 s52, s6, 3")
    a("s_add_u32 s52, s52, s8")
    a("s_lshr_b32 s8, s5, 3")
    a("s_lshl_b32 s53, s7, 2")
    a("s_add_u32 s53, s53, s8")

def helper(a):
    a.lab("L_k3_helper")
    a("s_sub_u32 s4, s3, 4")
    srd(a, 40, 36, A2_SIZE, WS_A2)
    srd(a, 44, 36, DN_SIZE, WS_DN)
    srd(a, 48, 36, G_SIZE, WS_G)
    a("v_lshlrev_b32 v1, 4, v0")
    a("v_add_u32 v2, 0x1000, v1")
    DN = 16
    a("s_mul_i32 s5, s4, 9216")
    for n in range(9):
        if n in (4, 8): a("s_add_u32 s5, s5, 4096")
        a("buffer_load_dwordx4 %s, v1, s[44:47], s5 offen offset:%d%s" % (vr(DN + 4 * n, 4), (n % 4) * 1024, LD))
    a("v_and_b32 v3, 15, v0")
    a("v_lshlrev_b32 v3, 2, v3")
    a("s_lshl_b32 s6, s52, 8")
    for i in range(4):
        a("buffer_load_dword v%d, v3, s[48:51], s6 offen offset:%d%s" % (8 + i, i * 64, LD))
    PQ = 64
    a("s_lshl_b32 s7, s52, 2")
    a("s_mul_i32 s7, s7, %d" % NKS)
    a("s_mul_i32 s8, s4, 5")
    a("s_add_u32 s7, s7, s8")
    a("s_add_u32 s7, s7, 54")
    a("s_lshl_b32 s7, s7, 10")
    for i in range(4):
        for j in range(5):
            if j < 4:
                a("buffer_load_dwordx4 %s, v1, s[40:43], s7 offen offset:%d%s" % (vr(PQ + (i * 5 + j) * 4, 4), j * 1024, LD))
            else:
                a("buffer_load_dwordx4 %s, v2, s[40:43], s7 offen%s" % (vr(PQ + (i * 5 + j) * 4, 4), LD))
        if i < 3: a("s_add_u32 s7, s7, %d" % (NKS * 1024))
    a("s_mul_i32 s9, s4, 20480")
    a("v_add_u32 v4, s9, v1")
    a("s_mov_b32 s10, 0xffff0000")
    a("s_mov_b32 s11, 0x358637bd")
    QJ = [(0,0),(0,1),(0,2),(1,1),(1,2),(1,3),(1,4),(2,3),(2,4)]
    DT = 160
    TMP = 192
    for i in range(4):
        a("s_waitcnt vmcnt(%d)" % (15 - 5 * i))
        dt = DT + (i % 2) * 12
        first = {}
        for n, (q, j) in enumerate(QJ):
            c = vr(dt + 4 * q, 4) if q in first else "0"
            first[q] = 1
            a("v_mfma_f32_16x16x32_bf16 %s, %s, %s, %s" % (vr(dt + 4 * q, 4), vr(DN + 4 * n, 4), vr(PQ + (i * 5 + j) * 4, 4), c))
        a("s_nop 7")
        for td in range(10):
            a("v_add_f32 v%d, s11, v%d" % (dt + td, dt + td))
        for td in range(10):
            a("v_rcp_f32 v%d, v%d" % (dt + td, dt + td))
        a("s_nop 0")
        for td in range(10):
            a("v_mul_f32 v%d, v%d, v%d" % (dt + td, dt + td, 8 + i))
        for j in range(5):
            f = PQ + (i * 5 + j) * 4
            t = TMP + (j % 2) * 8
            for h in range(2):
                sf = dt + 2 * j + h
                for e in range(2):
                    a("v_lshlrev_b32 v%d, 16, v%d" % (t + 4 * h + 2 * e, f + 2 * h + e))
                    a("v_and_b32 v%d, s10, v%d" % (t + 4 * h + 2 * e + 1, f + 2 * h + e))
                for e in range(4):
                    a("v_mul_f32 v%d, v%d, v%d" % (t + 4 * h + e, t + 4 * h + e, sf))
                for e in range(2):
                    a("v_cvt_pk_bf16_f32 v%d, v%d, v%d" % (f + 2 * h + e, t + 4 * h + 2 * e, t + 4 * h + 2 * e + 1))
            a("ds_write_b128 v4, %s offset:%d" % (vr(f, 4), (i * 5 + j) * 1024))
    a("s_waitcnt lgkmcnt(0)")
    a("s_barrier")
    a("s_endpgm")

def main_wave(a):
    srd(a, 40, 36, A2_SIZE, WS_A2)
    srd(a, 44, 36, W2_SIZE, WS_W2)
    srd(a, 48, 36, G_SIZE, WS_G)
    srd(a, 56, 32, S * D * 2)
    a("v_lshlrev_b32 v1, 4, v0")
    a("v_add_u32 v2, 0x1000, v1")
    for i in range(4):
        a("v_add_u32 v%d, 0x%x, v1" % (4 + i, i * NKS * 1024))
    a("v_and_b32 v3, 15, v0")
    a("v_lshlrev_b32 v3, 2, v3")
    a("s_lshl_b32 s6, s52, 8")
    for i in range(4):
        a("buffer_load_dword v%d, v3, s[48:51], s6 offen offset:%d%s" % (8 + i, i * 64, LD))
    a("s_mul_i32 s8, s3, 14")
    a("s_cmp_eq_u32 s3, 3")
    a("s_cselect_b32 s9, 2, 0")
    a("s_sub_u32 s8, s8, s9")
    a("s_lshl_b32 s60, s52, 2")
    a("s_mul_i32 s60, s60, %d" % NKS)
    a("s_add_u32 s60, s60, s8")
    a("s_lshl_b32 s60, s60, 10")
    a("s_mul_i32 s61, s53, %d" % NKS)
    a("s_add_u32 s62, s61, 54")
    a("s_add_u32 s61, s61, s8")
    a("s_mul_i32 s61, s61, 5120")
    a("s_mul_i32 s9, s3, 5")
    a("s_add_u32 s62, s62, s9")
    a("s_mul_i32 s62, s62, 5120")
    def load_h(b, sa="s60", sw="s61"):
        for i in range(4):
            a("buffer_load_dwordx4 %s, v%d, s[40:43], %s offen%s" % (vr(bufA(b, i), 4), 4 + i, sa, LD))
        for t in range(5):
            if t < 4:
                a("buffer_load_dwordx4 %s, v1, s[44:47], %s offen offset:%d" % (vr(bufW(b, t), 4), sw, t * 1024))
            else:
                a("buffer_load_dwordx4 %s, v2, s[44:47], %s offen" % (vr(bufW(b, t), 4), sw))
        a("s_add_u32 s60, s60, 1024")
        a("s_add_u32 s61, s61, 5120")
    def load_m(b):
        for t in range(5):
            if t < 4:
                a("buffer_load_dwordx4 %s, v1, s[44:47], s62 offen offset:%d%s" % (vr(bufW(b, t), 4), t * 1024, LD))
            else:
                a("buffer_load_dwordx4 %s, v2, s[44:47], s62 offen%s" % (vr(bufW(b, t), 4), LD))
        a("s_add_u32 s62, s62, 5120")
    def mm(b, asrc=None):
        for t in range(5):
            for i in range(4):
                src = bufA(b, i)
                a("v_mfma_f32_16x16x32_bf16 %s, %s, %s, %s" % (vr(acc(i, t), 4), vr(bufW(b, t), 4), vr(src, 4), vr(acc(i, t), 4)))
    a("s_cmp_eq_u32 s3, 3")
    a("s_cselect_b32 s63, 0x%x, s60" % OOB)
    a("s_cselect_b32 s64, 0x%x, s61" % OOB)
    load_h(0, "s63", "s64")
    a("s_cmp_eq_u32 s3, 3")
    a("s_cselect_b32 s63, 0x%x, s60" % OOB)
    a("s_cselect_b32 s64, 0x%x, s61" % OOB)
    load_h(1, "s63", "s64")
    load_h(2); load_h(3)
    for k in range(80): a("v_mov_b32 v%d, 0" % (ACC + k))
    a("s_mov_b32 s65, 2")
    a.lab("L_k3_loop")
    for b in range(4):
        a("s_waitcnt vmcnt(27)")
        mm(b)
        load_h(b)
    a("s_sub_u32 s65, s65, 1")
    a("s_cmp_lg_u32 s65, 0")
    a("s_cbranch_scc1 L_k3_loop")
    for b in range(2):
        a("s_waitcnt vmcnt(27)")
        mm(b); load_h(b)
    a("s_waitcnt vmcnt(27)"); mm(2); load_m(2)
    a("s_waitcnt vmcnt(23)"); mm(3); load_m(3)
    a("s_waitcnt vmcnt(19)"); mm(0); load_m(0)
    a("s_waitcnt vmcnt(15)"); mm(1); load_m(1)
    a("s_nop 7")
    for i in range(4):
        a("v_sub_f32 v%d, 1.0, v%d" % (12 + i, 8 + i))
    for t in range(5):
        for i in range(4):
            for r in range(4):
                a("v_mul_f32 v%d, v%d, v%d" % (acc(i, t) + r, acc(i, t) + r, 12 + i))
    a("s_barrier")
    a("s_mul_i32 s9, s3, 20480")
    a("v_add_u32 v3, s9, v1")
    order = [2, 3, 0, 1, 2]
    def read_a(j, b):
        for i in range(4):
            a("ds_read_b128 %s, v3 offset:%d" % (vr(bufA(b, i), 4), (i * 5 + j) * 1024))
    for j in range(4): read_a(j, order[j])
    a("s_waitcnt vmcnt(15) lgkmcnt(12)"); mm(2)
    load_m(2); read_a(4, 2)
    a("s_waitcnt vmcnt(15) lgkmcnt(12)"); mm(3)
    a("s_waitcnt vmcnt(10) lgkmcnt(8)"); mm(0)
    a("s_waitcnt vmcnt(5) lgkmcnt(4)"); mm(1)
    a("s_waitcnt vmcnt(0) lgkmcnt(0)"); mm(2)
    a("s_nop 7")
    a("s_mul_i32 s9, s3, 20480")
    a("s_add_u32 s9, s9, %d" % REDB)
    a("v_add_u32 v3, s9, v1")
    for i in range(4):
        for t in range(5):
            a("ds_write_b128 v3, %s offset:%d" % (vr(acc(i, t), 4), (i * 5 + t) * 1024))
    a("s_waitcnt lgkmcnt(0)")
    a("s_barrier")
    a("s_mul_i32 s9, s3, 5120")
    a("s_add_u32 s9, s9, %d" % REDB)
    a("v_add_u32 v3, s9, v1")
    a("v_add_u32 v4, 0xa000, v3")
    R = 96
    for src in range(4):
        for t in range(5):
            a("ds_read_b128 %s, v%d offset:%d" % (vr(R + (src * 5 + t) * 4, 4), 3 + src // 2, (src % 2) * 20480 + t * 1024))
    a("s_waitcnt lgkmcnt(0)")
    for t in range(5):
        for src in range(1, 4):
            a("v_pk_add_f32 %s, %s, %s" % (vr(R + t * 4, 2), vr(R + t * 4, 2), vr(R + (src * 5 + t) * 4, 2)))
            a("v_pk_add_f32 %s, %s, %s" % (vr(R + t * 4 + 2, 2), vr(R + t * 4 + 2, 2), vr(R + (src * 5 + t) * 4 + 2, 2)))
    a("v_and_b32 v3, 15, v0")
    a("v_mul_u32_u24 v3, 0x500, v3")
    a("v_lshrrev_b32 v4, 4, v0")
    a("v_lshl_add_u32 v3, v4, 3, v3")
    a("s_lshl_b32 s9, s52, 2")
    a("s_add_u32 s9, s9, s3")
    a("s_mul_i32 s9, s9, %d" % (16 * 1280))
    a("s_mul_i32 s10, s53, 160")
    a("s_add_u32 s9, s9, s10")
    for t in range(5):
        a("v_cvt_pk_bf16_f32 v%d, v%d, v%d" % (R + t * 4, R + t * 4, R + t * 4 + 1))
        a("v_cvt_pk_bf16_f32 v%d, v%d, v%d" % (R + t * 4 + 1, R + t * 4 + 2, R + t * 4 + 3))
        a("buffer_store_dwordx2 %s, v3, s[56:59], s9 offen offset:%d" % (vr(R + t * 4, 2), t * 32))
    a("s_endpgm")

def gen_k3():
    a = A()
    a.raw(khead("k3_kernel"))
    a("s_load_dwordx4 s[32:35], s[0:1], 64")
    a("s_load_dwordx2 s[36:37], s[0:1], 80")
    a("s_cmp_ge_u32 s2, 256")
    a("s_cbranch_scc1 L_k3_end")
    a("v_lshrrev_b32 v1, 6, v0")
    a("v_and_b32 v0, 63, v0")
    a("v_readfirstlane_b32 s3, v1")
    k3_decode(a)
    a("s_waitcnt lgkmcnt(0)")
    a("s_cmp_ge_u32 s3, 4")
    a("s_cbranch_scc1 L_k3_helper")
    main_wave(a)
    helper(a)
    a.lab("L_k3_end")
    a("s_endpgm")
    a.raw(kd("k3_kernel"))
    return a.text()
```

```python
import sys
from common import *
import k1, k2, k3
HDR = open("gated_mix__linear_attn_block__glu_gated_glu__prompt.s.ref").read().split("; Override")[0]
def build(which, path):
    t = HDR
    if "k1" in which: t += "; @launch kernel=k1_kernel grid=(256,1,1) block=(512,1,1) lds=%d\n" % k1.LDS_K1
    if "k2" in which: t += "; @launch kernel=k2_kernel grid=(16,1,1) block=(512,1,1) lds=0\n"
    if "k3" in which: t += "; @launch kernel=k3_kernel grid=(256,1,1) block=(512,1,1) lds=%d\n" % k3.LDS_K3
    t += '.amdgcn_target "amdgcn-amd-amdhsa--gfx950"\n.text\n'
    if "k1" in which: t += k1.gen_k1()
    if "k2" in which: t += k2.gen_k2()
    if "k3" in which: t += k3.gen_k3()
    open(path, "w").write(t)
if __name__ == "__main__":
    build(sys.argv[1].split(","), sys.argv[2])
```
